```python
import torch

def _softmax(x, axis=-1):
    return torch.softmax(x, dim=axis)
def _gelu(x):
    return torch.nn.functional.gelu(x, approximate="tanh")
def _silu(x):
    return torch.nn.functional.silu(x)
def _sigmoid(x):
    return torch.sigmoid(x)
def _layernorm(x, axis=-1, eps=1e-5):
    m = x.mean(dim=axis, keepdim=True)
    v = x.var(dim=axis, keepdim=True, unbiased=False)
    return (x - m) / torch.sqrt(v + eps)
def _scatter_add(tgt, idx, src, axis=0):
    return tgt.clone().index_add_(axis, idx, src)
def _segment_sum(src, seg, n):
    out = torch.zeros((n,) + src.shape[1:], dtype=src.dtype)
    return out.index_add_(0, seg, src)
def _pad(x, pw):
    flat = tuple(v for pair in reversed(pw) for v in pair)
    return torch.nn.functional.pad(x, flat)

kernel_name = 'sequential_preLN__mha_block_cached__mixer_channel_mlp__decode'

def setup_inputs():

    _w = (lambda a: (lambda t: t.to(torch.bfloat16) if t.is_floating_point() else t)(torch.as_tensor(a)))
    def _A_setup():
        B, Sq, D = 8, 1, 448
        H, Sk, Dh = 16, 4096, 256
        return {
            "x": _w((lambda *s: torch.randn(*s, dtype=torch.bfloat16) * 0.05)(B, Sq, D)),
            "k_cache": _w((lambda *s: torch.randn(*s, dtype=torch.bfloat16) * 3.2)(B, H, Sk, Dh)),
            "v_cache": _w((lambda *s: torch.randn(*s, dtype=torch.bfloat16) * 0.4)(B, H, Sk, Dh)),
            "wq": _w((lambda *s: torch.randn(*s, dtype=torch.bfloat16) * 3.2)(D, H * Dh) * (D ** -0.5)),
            "wo": _w((lambda *s: torch.randn(*s, dtype=torch.bfloat16) * 0.4)(H * Dh, D) * ((H * Dh) ** -0.5)),
        }
    _A_in = _A_setup()

    def _B_setup():
        B, S, D, F = 8, 1, 448, 1792
        return {
            "x": _w((lambda *s: torch.randn(*s, dtype=torch.bfloat16) * 0.05)(B, S, D)),
            "w1": _w((lambda *s: torch.randn(*s, dtype=torch.bfloat16) * 3.2)(D, F) * (D ** -0.5)),
            "b1": _w((lambda *s: torch.randn(*s, dtype=torch.bfloat16) * 1.6)(F)),
            "w2": _w((lambda *s: torch.randn(*s, dtype=torch.bfloat16) * 0.8)(F, D) * (F ** -0.5)),
            "b2": _w((lambda *s: torch.randn(*s, dtype=torch.bfloat16) * 1.6)(D)),
        }
    _B_in = _B_setup()

    return {
        "A_x": _A_in["x"],
        "A_k_cache": _A_in["k_cache"],
        "A_v_cache": _A_in["v_cache"],
        "A_wq": _A_in["wq"],
        "A_wo": _A_in["wo"],
        "B_x": _B_in["x"],
        "B_w1": _B_in["w1"],
        "B_b1": _B_in["b1"],
        "B_w2": _B_in["w2"],
        "B_b2": _B_in["b2"],
    }

def reference(A_x, A_k_cache, A_v_cache, A_wq, A_wo, B_x, B_w1, B_b1, B_w2, B_b2):
    def _A_ref(x, k_cache, v_cache, wq, wo):
        B, Sq, D = x.shape
        H, Dh = 16, 256
        q = (lambda x, *d: x.permute(*d))((x @ wq).reshape(B, Sq, H, Dh), 0, 2, 1, 3)
        scores = torch.einsum("bhqd,bhkd->bhqk", q, k_cache) * (Dh ** -0.5)
        p = _softmax(scores, axis=-1)
        o = torch.einsum("bhqk,bhkd->bhqd", p, v_cache)
        return (lambda x, *d: x.permute(*d))(o, 0, 2, 1, 3).reshape(B, Sq, H * Dh) @ wo

    def _B_ref(x, w1, b1, w2, b2):
        y = _layernorm(x, axis=-1)
        h = _gelu(torch.einsum("bsd,df->bsf", y, w1) + b1)
        return torch.einsum("bsf,fd->bsd", h, w2) + b2

    x = A_x
    h = x + _A_ref(_layernorm(x, axis=-1), A_k_cache, A_v_cache, A_wq, A_wo)
    h2 = h + _B_ref(_layernorm(h, axis=-1), B_w1, B_b1, B_w2, B_b2)
    return h2
```

```python
import re
TRANS = ('v_exp_f32','v_log_f32','v_rcp_f32','v_rsq_f32','v_sqrt_f32','v_sin_f32','v_cos_f32')
def regs(op):
    op = op.strip()
    op = re.sub(r'^-|^abs\(|\)$|^\|', '', op).strip('|')
    m = re.fullmatch(r'([vsa])\[(\d+):(\d+)\]', op)
    if m: return [f'{m.group(1)}{i}' for i in range(int(m.group(2)), int(m.group(3))+1)]
    m = re.fullmatch(r'([vsa])(\d+)', op)
    if m: return [op]
    if op == 'vcc': return ['vcc']
    if op in ('vcc_lo','vcc_hi'): return ['vcc']
    if op in ('exec','exec_lo','exec_hi'): return ['exec']
    if op == 'm0': return ['m0']
    return []
class I:
    def __init__(s, text, idx):
        s.text = text; s.idx = idx
        t = text.split(';')[0].strip()
        parts = t.split(None, 1)
        s.op = parts[0]; rest = parts[1] if len(parts) > 1 else ''
        ops = [x.strip() for x in re.split(r',(?![^\[]*\])', rest)] if rest else []
        s.mods = ''
        if ops:
            last = ops[-1].split(None, 1)
            ops[-1] = last[0]
            if len(last) > 1: s.mods = last[1]
        s.ops = ops
        o = s.op
        s.mfma = o.startswith('v_mfma') or o.startswith('v_smfmac')
        s.valu = o.startswith('v_') and not s.mfma
        s.dpp = s.valu and ('_dpp' in o or 'quad_perm' in s.mods or 'row_' in s.mods)
        s.perm = o.startswith('v_permlane')
        s.rdlane = o.startswith('v_readlane') or o.startswith('v_readfirstlane')
        s.trans = any(o.startswith(x) for x in TRANS)
        s.vmem = o.startswith('buffer_') or o.startswith('global_') or o.startswith('flat_')
        s.ds = o.startswith('ds_')
        s.salu = o.startswith('s_')
        w = []; r = []
        if s.mfma:
            w = regs(ops[0]); s.A = regs(ops[1]); s.B = regs(ops[2]); s.C = regs(ops[3]); r = s.A+s.B+s.C
            s.passes = 8 if '32x32' in o else 4
        elif s.valu:
            if s.perm and 'swap' in o:
                w = regs(ops[0])+regs(ops[1]); r = list(w)
            else:
                w = regs(ops[0]); rs = ops[1:]
                if o.startswith(('v_add_co','v_sub_co','v_addc_co','v_subb_co','v_div_scale')): w += regs(ops[1]); rs = ops[2:]
                for x in rs: r += regs(x)
                if o.startswith(('v_fmac','v_dot2c','v_mac','v_writelane')) or s.dpp: r += regs(ops[0])
                if o.startswith('v_cmpx'): w += ['exec']
                if o.startswith('v_cndmask') and len(ops) == 3: r += ['vcc']
        elif s.vmem:
            if 'load' in o:
                if 'lds' in s.mods.split():
                    for x in ops: r += regs(x)
                    r += ['m0']
                else:
                    w = regs(ops[0])
                    for x in ops[1:]: r += regs(x)
                    if 'd16' in o: r += regs(ops[0])
            else:
                for x in ops: r += regs(x)
                if 'atomic' in o and 'sc0' in s.mods.split(): w = regs(ops[0])
        elif s.ds:
            if o.startswith(('ds_read','ds_bpermute','ds_permute','ds_swizzle')) or '_rtn' in o:
                w = regs(ops[0])
                for x in ops[1:]: r += regs(x)
            else:
                for x in ops: r += regs(x)
        elif s.salu:
            if o.startswith(('s_cmp','s_bitcmp','s_cbranch','s_branch','s_waitcnt','s_nop','s_barrier','s_sleep','s_endpgm','s_setprio')):
                for x in ops: r += regs(x)
            else:
                w = regs(ops[0]) if ops else []
                for x in ops[1:]: r += regs(x)
                if 'saveexec' in o: w += ['exec']
        s.w = set(w); s.r = set(r)
        s.ws = (int(ops[0], 0)+1) if o == 's_nop' else 1
        s.wide_store = s.vmem and 'store' in o and ('x3' in o or 'x4' in o)
def need(p, c):
    n = 0
    vw = {x for x in p.w if x[0] in 'va' and x != 'vcc'}
    sw = {x for x in p.w if x[0] == 's' or x == 'vcc'}
    if p.valu:
        if c.mfma and vw & c.r: n = max(n, 2)
        if c.dpp and vw & c.r: n = max(n, 2)
        if c.perm and vw & c.r: n = max(n, 2)
        if c.rdlane and vw & c.r: n = max(n, 1)
        if p.trans and c.valu and not c.trans and vw & c.r: n = max(n, 1)
        if p.trans and (c.mfma) and vw & c.r: n = max(n, 2)
        if sw:
            if c.valu and sw & c.r: n = max(n, 4 if (c.rdlane or c.op.startswith('v_writelane') or c.op.startswith('v_div_fmas')) else 2)
            if c.vmem and sw & c.r: n = max(n, 5)
            if c.salu and sw & c.r and not c.op.startswith('s_cbranch'): n = max(n, 1)
        if 'exec' in p.w:
            if c.dpp: n = max(n, 5)
            if c.mfma or c.perm or c.rdlane: n = max(n, 4)
    if p.mfma:
        k = {4: 8, 8: 12}[p.passes]
        if c.mfma:
            if vw & set(c.A + c.B): n = max(n, k)
            if vw & set(c.C) and not (set(c.C) == vw and c.passes == p.passes): n = max(n, {4: 6, 8: 10}[p.passes])
            if vw & c.w and not (set(c.C) == vw and c.w == vw): n = max(n, {4: 6, 8: 10}[p.passes])
        elif (c.valu or c.vmem or c.ds) and vw & (c.r | c.w): n = max(n, k)
        if c.valu and set(p.C) & c.w: n = max(n, {4: 3, 8: 7}[p.passes])
    if p.wide_store:
        data = set(regs(p.ops[0])) if p.op.startswith('buffer') else set(regs(p.ops[1]))
        if c.valu and data & c.w: n = max(n, 2)
        elif data & c.w: n = max(n, 1)
    if p.salu and 'm0' in p.w and (c.vmem and 'm0' in c.r): n = max(n, 1)
    return n
def check(lines):
    ins = []; labels = {}
    for ln in lines:
        t = ln.split(';')[0].strip()
        if not t or t.startswith('.'): continue
        if t.endswith(':'): labels[t[:-1]] = len(ins); continue
        ins.append(I(t, len(ins)))
    def succ(i):
        x = ins[i]
        if x.op == 's_endpgm': return []
        if x.op == 's_branch': return [labels[x.ops[0]]]
        out = [i+1] if i+1 < len(ins) else []
        if x.op.startswith('s_cbranch'): out.append(labels[x.ops[0]])
        return out
    errs = []
    for p in ins:
        if not (p.valu or p.mfma or p.wide_store or (p.salu and 'm0' in p.w)): continue
        stack = [(j, 0) for j in succ(p.idx)]; seen = {}
        while stack:
            j, d = stack.pop()
            if j >= len(ins) or d >= 13 or seen.get(j, 99) <= d: continue
            seen[j] = d
            c = ins[j]
            n = need(p, c)
            if n > d: errs.append(f'need {n} have {d}: [{p.idx}] {p.text}  ->  [{j}] {c.text}')
            for k in succ(j): stack.append((k, d + c.ws))
    return errs
if __name__ == '__main__':
    import sys
    L = open(sys.argv[1]).read().split('\n')
    e = check(L)
    print('\n'.join(e) if e else 'no hazards found')
```

```python
import sys, struct
import hazard
KN = 'sequential_preLN__mha_block_cached__mixer_channel_mlp__decode_kernel'

def f2u(x): return struct.unpack('<I', struct.pack('<f', x))[0]
C_EXP = f2u(1.4426950408889634/16)
INV448 = f2u(1.0/448)
EPS = f2u(1e-5)

DEF = dict(W0=8, WK=5, WV=5, WV0=5, polS='nt', polQ='', polW='', WSIDE=2, ts=False, sleep_poll=2, b2early=0)

L_QP = 0; L_PP = 4096; L_ML = 12288; L_OP = 12352; L_T3 = 16960; L_HP = 31552; L_YY = 39744; L_HH = 41920; L_M1 = 44096; L_END = 46144
T3W = 3648
W_NONCE = 0; W_R1 = 4096; W_R2 = W_R1 + 8*65536; W_TS = 4 << 20
OOB = 0x40000000
SPIN = 1 << 20

class A:
    def __init__(s): s.L = []; s.n = 0
    def __call__(s, t):
        for x in t.split('\n'):
            x = x.strip()
            if x: s.L.append(x if x.endswith(':') or x.startswith('.') or x.startswith(';') else '    ' + x)
    def lab(s, p='L'):
        s.n += 1; return f'{p}_{s.n}'
def vr(a, n=4): return f'v[{a}:{a+n-1}]'
def sr(a, n=4): return f's[{a}:{a+n-1}]'
DPP = 'row_mask:0xf bank_mask:0xf'

def gen(**kw):
    P = dict(DEF); P.update(kw)
    a = A()
    ts_idx = [0]
    sX, sK, sV, sWQ, sWO, sW1, sB1, sW2, sB2, sOUT, sDBG, sWS = 16, 18, 20, 22, 24, 28, 30, 32, 34, 36, 38, 40
    sXCD, sH, sS, sB, sJM, sW, sPI = 4, 5, 6, 7, 8, 9, 10
    rS, rA, rM, rR1, rR2, rO = 44, 48, 52, 56, 60, 64
    sT = 68; sOA = 69; sOB = 70; sCNT = 71; sMASK = 72; sTMP = 73; sT2 = 74; sT3 = 75
    sAL = 76
    sM4 = 80
    sTS = 88
    def srd(r, base, off_s, size):
        if off_s is None:
            a(f's_mov_b32 s{r}, s{base}'); a(f's_mov_b32 s{r+1}, s{base+1}')
        else:
            a(f's_add_u32 s{r}, s{base}, {off_s}'); a(f's_addc_u32 s{r+1}, s{base+1}, 0')
        a(f's_mov_b32 s{r+2}, {size}'); a(f's_mov_b32 s{r+3}, 0x20000')
    def stamp(k):
        if P['ts']:
            a('s_memrealtime s[14:15]'); a('s_waitcnt lgkmcnt(0)'); a(f's_mov_b32 s{sTS+k}, s14')
    def ts_flush():
        if P['ts']:
            a('s_getreg_b32 s14, hwreg(HW_REG_XCC_ID)'); a(f's_mov_b32 s{sTS+11}, s14')
            a('s_mov_b64 exec, -1')
            for k in range(12): a(f'v_mov_b32 v{32+k}, s{sTS+k}')
            a('s_lshl_b32 s14, s2, 3'); a('s_add_u32 s14, s14, s3'); a('s_lshl_b32 s14, s14, 6'); a(f's_add_u32 s14, s14, {W_TS}')
            a('v_mov_b32 v31, s14'); a('s_mov_b64 exec, 1')
            for k in range(3): a(f'global_store_dwordx4 v31, {vr(32+4*k)}, {sr(sWS,2)} offset:{16*k}')
    def allreduce(op, x, t):
        for k in (8, 4, 2, 1):
            a('s_nop 1'); a(f'{op}_dpp v{x}, v{x}, v{x} row_ror:{k} {DPP}')
        for sw in ('v_permlane16_swap_b32', 'v_permlane32_swap_b32'):
            a(f'v_mov_b32 v{t}, v{x}'); a('s_nop 1'); a(f'{sw} v{x}, v{t}'); a(f'{op} v{x}, v{x}, v{t}')
    def bfr(x, t=None):
        a(f'v_cvt_pk_bf16_f32 v{x}, v{x}, v{x}'); a(f'v_and_b32 v{x}, 0xffff0000, v{x}')
    def bfr2(x, y):
        a(f'v_cvt_pk_bf16_f32 v{y}, v{x}, v{y}'); a(f'v_lshlrev_b32 v{x}, 16, v{y}'); a(f'v_and_b32 v{y}, 0xffff0000, v{y}')
    def masks(m0, t0, t1):
        a(f'v_and_b32 v{t0}, 1, v0'); a(f'v_lshlrev_b32 v{t0}, 4, v{t0}'); a(f'v_mov_b32 v{t1}, 0xffff'); a(f'v_lshlrev_b32 v{t1}, v{t0}, v{t1}')
        a(f'v_bfe_u32 v{t0}, v0, 1, 2')
        for r in range(4):
            a(f'v_cmp_eq_u32 vcc, {r}, v{t0}'); a('s_nop 1'); a(f'v_cndmask_b32 v{m0+r}, 0, v{t1}, vcc')
    def ln_stats(vals_full, vals_part, part_hi, s, t, mean, rden):
        allv = vals_full + vals_part
        a(f'v_add_f32 v{s}, v{allv[0]}, v{allv[1]}')
        a(f'v_add_f32 v{t}, v{allv[2]}, v{allv[3]}')
        for i in range(4, len(allv), 2):
            a(f'v_add_f32 v{s}, v{s}, v{allv[i]}'); a(f'v_add_f32 v{t}, v{t}, v{allv[i+1]}')
        a(f'v_add_f32 v{s}, v{s}, v{t}')
        allreduce('v_add_f32', s, t)
        a(f'v_mul_f32 v{mean}, 0x{INV448:x}, v{s}')
        a(f'v_mov_b32 v{s}, 0')
        for v in vals_full:
            a(f'v_sub_f32 v{t}, v{v}, v{mean}'); a(f'v_fmac_f32 v{s}, v{t}, v{t}')
        a(f's_mov_b32 exec_hi, 0x{part_hi:x}')
        for v in vals_part:
            a(f'v_sub_f32 v{t}, v{v}, v{mean}'); a(f'v_fmac_f32 v{s}, v{t}, v{t}')
        a('s_mov_b32 exec_hi, -1')
        allreduce('v_add_f32', s, t)
        a(f'v_mul_f32 v{s}, 0x{INV448:x}, v{s}')
        bfr2(mean, s)
        a(f'v_add_f32 v{s}, 0x{EPS:x}, v{s}'); bfr(s)
        a(f'v_sqrt_f32 v{s}, v{s}'); a('s_nop 0'); bfr(s)
        a(f'v_rcp_f32 v{rden}, v{s}'); a('s_nop 0')
    def ln_apply(pairs, mean, rden, last=False):
        for x, y in pairs:
            a(f'v_sub_f32 v{x}, v{x}, v{mean}'); a(f'v_sub_f32 v{y}, v{y}, v{mean}'); bfr2(x, y)
            a(f'v_mul_f32 v{x}, v{x}, v{rden}'); a(f'v_mul_f32 v{y}, v{y}, v{rden}')
            if last:
                a(f'v_cvt_pk_bf16_f32 v{x}, v{x}, v{x}'); a(f'v_cvt_pk_bf16_f32 v{y}, v{y}, v{y}')
            else: bfr2(x, y)
    def get_nonce(t):
        lp = a.lab('L_nonce'); dn = a.lab('L_nonce_ok')
        a(f's_mov_b32 s{sCNT}, {SPIN}'); a(f'v_mov_b32 v{t+1}, 0')
        a(f'{lp}:')
        a(f'global_load_dword v{t}, v{t+1}, {sr(sDBG,2)} sc1'); a('s_waitcnt vmcnt(0)')
        a(f'v_readfirstlane_b32 s{sT}, v{t}'); a('s_nop 0')
        a(f's_bitcmp1_b32 s{sT}, 8'); a(f's_cbranch_scc1 {dn}')
        a('s_sleep 8'); a(f's_sub_u32 s{sCNT}, s{sCNT}, 1'); a(f's_cmp_lg_u32 s{sCNT}, 0'); a(f's_cbranch_scc1 {lp}')
        a(f'{dn}:'); a(f's_and_b32 s{sT}, s{sT}, 0xff')

    a(f'; @launch grid=(256,1,1) block=(512,1,1) lds={L_END}')
    a('.amdgcn_target "amdgcn-amd-amdhsa--gfx950"'); a('.text'); a(f'.globl {KN}'); a('.p2align 8'); a(f'.type {KN},@function'); a(f'{KN}:')
    a('s_cmp_ge_u32 s2, 256'); a('s_cbranch_scc1 L_end')
    a('s_load_dwordx16 s[16:31], s[0:1], 0'); a('s_load_dwordx8 s[32:39], s[0:1], 64'); a('s_load_dwordx2 s[40:41], s[0:1], 96')
    if P['ts']:
        a(f's_memrealtime s[{sTS}:{sTS+1}]')
    a('v_lshrrev_b32 v1, 6, v0'); a('v_and_b32 v0, 63, v0'); a('v_readfirstlane_b32 s3, v1')
    a(f's_and_b32 s{sXCD}, s2, 7'); a('s_lshr_b32 s11, s2, 3')
    a('s_and_b32 s12, s11, 1'); a('s_lshl_b32 s12, s12, 3'); a(f's_add_u32 s{sH}, s{sXCD}, s12')
    a(f's_bfe_u32 s{sS}, s11, 0x10001'); a(f's_lshr_b32 s{sB}, s11, 2')
    a('s_and_b32 s12, s11, 3'); a('s_lshl_b32 s12, s12, 3'); a(f's_add_u32 s{sJM}, s12, s{sXCD}')
    a(f's_and_b32 s{sW}, s3, 3')
    a(f's_lshl_b32 s{sPI}, s{sH}, 1'); a(f's_add_u32 s{sPI}, s{sPI}, s{sS}')
    a(f's_lshl_b32 s12, s{sB}, 5'); a(f's_add_u32 s12, s12, s{sPI}'); a('s_lshl_b32 s13, s12, 20')
    a(f's_lshl_b32 s{sOA}, s{sW}, 13'); a(f's_add_u32 s{sOB}, s{sOA}, 4096')
    a('s_cmp_ge_u32 s3, 4'); a('s_cbranch_scc1 L_vwave')

    RING = 32; BQ = 160; QT = 192
    a('v_bfe_u32 v1, v0, 2, 2'); a('v_lshlrev_b32 v1, 9, v1'); a('v_and_b32 v2, 3, v0'); a('v_lshrrev_b32 v3, 4, v0'); a('v_lshl_add_u32 v2, v3, 2, v2'); a('v_lshl_add_u32 v1, v2, 4, v1')
    a('s_waitcnt lgkmcnt(0)')
    srd(rS, sK, 's13', 1 << 20)
    def sload(n, ring, slot, vo):
        u, t = (n >> 1) & 3, n & 1
        a(f'buffer_load_dwordx4 {vr(ring+4*slot)}, v{vo}, {sr(rS)}, s{sOA if u < 2 else sOB} offen offset:{(u&1)*2048+t*256} {P["polS"]}')
        if n & 7 == 7:
            a(f's_add_u32 s{sOA}, s{sOA}, 32768'); a(f's_add_u32 s{sOB}, s{sOB}, 32768')
    for n in range(32):
        if n >= P['W0']: a(f's_waitcnt vmcnt({P["W0"]-1})')
        sload(n, RING, n, 1)
    for m in range(4):
        a(f's_mov_b32 s{sM4+2*m}, 0x{0x11111111 << m:x}'); a(f's_mov_b32 s{sM4+2*m+1}, 0x{0x11111111 << m:x}')
    a('v_lshlrev_b32 v2, 5, v2')
    stamp(1)
    a('s_barrier')
    stamp(2)
    for t in range(2):
        for v in range(4):
            for hlf in range(2):
                a(f'ds_read_b128 {vr(QT+32*t+8*v+4*hlf)}, v2 offset:{L_QP+v*1024+t*512+hlf*16}')
    a('v_bfe_u32 v3, v0, 2, 2')
    for t in range(2):
        a(f's_waitcnt lgkmcnt({8*(1-t)})')
        q = QT+32*t
        for e in range(8):
            a(f'v_add_f32 v{q+e}, v{q+e}, v{q+8+e}'); a(f'v_add_f32 v{q+16+e}, v{q+16+e}, v{q+24+e}')
        for e in range(8): a(f'v_add_f32 v{q+e}, v{q+e}, v{q+16+e}')
        for r in range(4): a(f'v_cvt_pk_bf16_f32 v{q+r}, v{q+2*r}, v{q+2*r+1}')
    for u in range(4):
        a(f'v_cmp_eq_u32 vcc, {u}, v3'); a('s_nop 1')
        for t in range(2):
            for r in range(4): a(f'v_cndmask_b32 v{BQ+8*u+4*t+r}, 0, v{QT+32*t+r}, vcc')
    S0 = 16; TT = 24; SC = 26
    def kpost(m):
        acc = 8 + 4*(m & 1)
        a(f'v_mov_b32_dpp v{TT}, v{acc} quad_perm:[0,0,0,0] {DPP}'); a(f'v_mov_b32_dpp v{TT+1}, v{acc+2} quad_perm:[2,2,2,2] {DPP}'); a('s_nop 0')
        a(f'v_add_f32_dpp v{TT}, v{acc+1}, v{TT} quad_perm:[1,1,1,1] {DPP}'); a(f'v_add_f32_dpp v{TT+1}, v{acc+3}, v{TT+1} quad_perm:[3,3,3,3] {DPP}')
        if m == 0: a(f'v_add_f32 v{SC}, v{TT}, v{TT+1}')
        else:
            a(f'v_add_f32 v{TT}, v{TT}, v{TT+1}'); a(f'v_cndmask_b32 v{SC}, v{SC}, v{TT}, {sr(sM4+2*m,2)}')
        if m == 3:
            for k in range(7): a(f'v_mov_b32 v{S0+k}, v{S0+k+1}')
            a(f'v_mov_b32 v{S0+7}, v{SC}')
    def kmfma(n):
        m = (n >> 3) & 3; acc = 8 + 4*(m & 1); u, t = (n >> 1) & 3, n & 1
        a(f'v_mfma_f32_16x16x32_bf16 {vr(acc)}, {vr(RING+4*n)}, {vr(BQ+8*u+4*t)}, {"0" if n & 7 == 0 else vr(acc)}')
    a(f's_mov_b32 s{sCNT}, 7'); a('s_waitcnt vmcnt(31)')
    a('L_kloop:')
    for n in range(32):
        kmfma(n)
        a(f's_waitcnt vmcnt({P["WK"]-1})')
        sload(n, RING, n, 1)
        if n & 7 == 7:
            a('s_nop 3'); kpost(n >> 3)
    a(f's_sub_u32 s{sCNT}, s{sCNT}, 1'); a(f's_cmp_lg_u32 s{sCNT}, 0'); a('s_cbranch_scc1 L_kloop')
    stamp(3)
    a('s_barrier')
    for n in range(32):
        if 31-n < P['WK']: a(f's_waitcnt vmcnt({31-n})')
        kmfma(n)
        if n & 7 == 7:
            a('s_nop 7'); kpost(n >> 3)
    for k in range(0, 8, 2): bfr2(S0+k, S0+k+1)
    a(f'v_max3_f32 v2, v{S0}, v{S0+1}, v{S0+2}'); a(f'v_max3_f32 v3, v{S0+3}, v{S0+4}, v{S0+5}'); a(f'v_max3_f32 v2, v2, v{S0+6}, v{S0+7}'); a('v_max_f32 v2, v2, v3')
    allreduce('v_max_f32', 2, 3)
    for k in range(8):
        a(f'v_sub_f32 v{S0+k}, v{S0+k}, v2'); a(f'v_mul_f32 v{S0+k}, 0x{C_EXP:x}, v{S0+k}')
    for k in range(8): a(f'v_exp_f32 v{S0+k}, v{S0+k}')
    a(f's_lshl_b32 s12, s{sW}, 11'); a('v_lshl_add_u32 v1, v0, 2, s12')
    a(f'v_add_f32 v3, v{S0}, v{S0+1}'); a(f'v_add_f32 v8, v{S0+2}, v{S0+3}'); a(f'v_add_f32 v9, v{S0+4}, v{S0+5}'); a(f'v_add_f32 v10, v{S0+6}, v{S0+7}')
    for k in range(8):
        a(f'v_cvt_pk_bf16_f32 v{S0+k}, v{S0+k}, v{S0+k}'); a(f'ds_write_b32 v1, v{S0+k} offset:{L_PP+k*256}')
    a('v_add_f32 v3, v3, v8'); a('v_add_f32 v9, v9, v10'); a('v_add_f32 v3, v3, v9')
    allreduce('v_add_f32', 3, 8)
    a(f's_lshl_b32 s12, s{sW}, 3'); a('v_mov_b32 v1, s12'); a(f'ds_write_b64 v1, v[2:3] offset:{L_ML}')
    a('s_waitcnt lgkmcnt(0)')
    stamp(4)
    a('s_barrier')
    get_nonce(2)
    a(f's_lshl_b32 s12, s{sB}, 16'); a(f's_add_u32 s12, s12, {W_R1}'); srd(rR1, sWS, 's12', 65536)
    a('v_mov_b32 v1, 0'); a(f'ds_read_b128 v[8:11], v1 offset:{L_ML}'); a(f'ds_read_b128 v[12:15], v1 offset:{L_ML+16}'); a('s_waitcnt lgkmcnt(0)')
    a('v_max3_f32 v2, v8, v10, v12'); a('v_max_f32 v2, v2, v14')
    for v in range(4):
        a(f'v_sub_f32 v{16+v}, v{8+2*v}, v2'); a(f'v_mul_f32 v{16+v}, 0x{C_EXP:x}, v{16+v}')
    for v in range(4): a(f'v_exp_f32 v{16+v}, v{16+v}')
    a('s_nop 0'); a('v_mul_f32 v3, v16, v9'); a('v_fmac_f32 v3, v17, v11'); a('v_fmac_f32 v3, v18, v13'); a('v_fmac_f32 v3, v19, v15')
    a('v_and_b32 v3, 0xffffff00, v3')
    a(f'v_or_b32 v20, s{sT}, v2'); a(f'v_or_b32 v21, s{sT}, v3')
    a(f's_lshl_b32 s12, s{sPI}, 11')
    skip = a.lab('L_noml')
    a(f's_cmp_lg_u32 s{sW}, 0'); a(f's_cbranch_scc1 {skip}')
    a('s_mov_b64 exec, 1'); a(f'buffer_store_dwordx2 v[20:21], off, {sr(rR1)}, s12 offset:1792 sc1'); a('s_mov_b64 exec, -1')
    a(f'{skip}:')
    WO = 32
    a(f's_lshl_b32 s12, s{sH}, 2'); a(f's_add_u32 s12, s12, s{sW}'); a('s_mul_i32 s12, s12, 57344')
    srd(rA, sWO, 's12', 57344)
    a('v_lshrrev_b32 v1, 4, v0'); a('v_mul_u32_u24 v1, 1792, v1'); a('v_and_b32 v22, 15, v0'); a('v_lshl_add_u32 v1, v22, 4, v1')
    a(f's_mov_b32 s{sOA}, 0')
    for n in range(56):
        gi, t = divmod(n, 7)
        if n >= P['WSIDE']: a(f's_waitcnt vmcnt({P["WSIDE"]-1})')
        a(f'buffer_load_dwordx4 {vr(WO+4*n)}, v1, {sr(rA)}, s{sOA} offen offset:{t*256} {P["polW"]}')
        if t == 6: a(f's_add_u32 s{sOA}, s{sOA}, 7168')
    masks(4, 22, 23)
    a(f's_xor_b32 s12, s{sPI}, 1'); a('s_lshl_b32 s12, s12, 11'); a(f's_mov_b32 s{sCNT}, {SPIN}')
    lp = a.lab('L_ml'); dn = a.lab('L_ml_ok')
    a(f'{lp}:')
    a(f'buffer_load_dwordx2 v[22:23], off, {sr(rR1)}, s12 offset:1792 sc1'); a('s_waitcnt vmcnt(0)')
    a(f'v_xor_b32 v22, s{sT}, v22'); a(f'v_xor_b32 v23, s{sT}, v23'); a('v_or_b32 v24, v22, v23'); a('v_and_b32 v24, 0xff, v24')
    a('v_cmp_eq_u32 vcc, 0, v24'); a(f's_cbranch_vccnz {dn}')
    a('s_sleep 16'); a(f's_sub_u32 s{sCNT}, s{sCNT}, 1'); a(f's_cmp_lg_u32 s{sCNT}, 0'); a(f's_cbranch_scc1 {lp}')
    a(f'{dn}:')
    a('v_max_f32 v24, v2, v22')
    a('v_sub_f32 v25, v2, v24'); a('v_sub_f32 v26, v22, v24'); a(f'v_mul_f32 v25, 0x{C_EXP:x}, v25'); a(f'v_mul_f32 v26, 0x{C_EXP:x}, v26')
    a('v_exp_f32 v25, v25'); a('v_exp_f32 v26, v26'); a('s_nop 0')
    a('v_mul_f32 v27, v25, v3'); a('v_fmac_f32 v27, v26, v23'); a('v_rcp_f32 v27, v27'); a('s_nop 0'); a('v_mul_f32 v27, v27, v25')
    for v in range(4): a(f'v_mul_f32 v{16+v}, v{16+v}, v27')
    a('s_nop 0')
    for v in range(4): a(f'v_readfirstlane_b32 s{sAL+v}, v{16+v}')
    a('v_lshrrev_b32 v1, 3, v0'); a('v_mul_u32_u24 v1, 144, v1'); a(f's_lshl_b32 s12, s{sW}, 5'); a('v_add_u32 v1, s12, v1')
    a('v_lshrrev_b32 v2, 4, v0'); a('v_lshlrev_b32 v2, 7, v2'); a('v_and_b32 v3, 7, v0'); a('v_lshl_add_u32 v2, v3, 4, v2'); a(f's_mul_i32 s12, s{sW}, {T3W}'); a('v_add_u32 v2, s12, v2')
    a('v_and_b32 v3, 1, v0'); a(f'v_mul_u32_u24 v3, {2*T3W}, v3'); a('v_lshrrev_b32 v16, 1, v0'); a('v_lshl_add_u32 v3, v16, 4, v3'); a(f's_lshl_b32 s12, s{sW}, 9'); a('v_add_u32 v3, s12, v3')
    a(f's_lshl_b32 s{sOA}, s{sPI}, 11'); a(f's_add_u32 s{sOA}, s{sOA}, s12')
    a(f's_mov_b32 s{sM4}, 0x55555555'); a(f's_cmp_eq_u32 s{sW}, 3'); a(f's_cselect_b32 s{sM4+1}, 0, s{sM4}')
    stamp(5)
    a('s_barrier')
    stamp(6)
    O = 8; T = 16
    for v, dst in ((0, T), (1, T+8), (2, O)):
        for hlf in range(2): a(f'ds_read_b128 {vr(dst+4*hlf)}, v1 offset:{L_OP+v*1152+hlf*16}')
    a('s_waitcnt lgkmcnt(4)')
    for k in range(8): a(f'v_mul_f32 v{T+k}, s{sAL}, v{T+k}')
    a('s_waitcnt lgkmcnt(2)')
    for k in range(8): a(f'v_fmac_f32 v{T+k}, s{sAL+1}, v{T+8+k}')
    for hlf in range(2): a(f'ds_read_b128 {vr(T+8+4*hlf)}, v1 offset:{L_OP+3*1152+hlf*16}')
    a('s_waitcnt lgkmcnt(2)')
    for k in range(8): a(f'v_fmac_f32 v{T+k}, s{sAL+2}, v{O+k}')
    a('s_waitcnt lgkmcnt(0)')
    for k in range(8):
        a(f'v_fmac_f32 v{T+k}, s{sAL+3}, v{T+8+k}'); a(f'v_cvt_pk_bf16_f32 v{O+k}, v{T+k}, v{T+k}')
    def wob(gi):
        for r in range(4): a(f'v_and_b32 v{T+4*(gi&1)+r}, v{O+gi}, v{4+r}')
    wob(0); a('s_nop 1')
    for gi in range(8):
        for t in range(7):
            a(f'v_mfma_f32_16x16x32_bf16 {vr(WO+4*t)}, {vr(WO+28*gi+4*t)}, {vr(T+4*(gi&1))}, {"0" if gi == 0 else vr(WO+4*t)}')
            if t == 1 and gi < 7: wob(gi+1)
    a('s_mov_b32 exec_lo, 0x00ff00ff'); a('s_mov_b32 exec_hi, 0x00ff00ff')
    for t in range(7):
        if t == 3: a('s_mov_b32 exec_hi, 0xff00ff00')
        if t == 4: a('s_mov_b32 exec_lo, 0xff00ff00')
        if t == 6: a('s_nop 0')
        a(f'ds_write_b128 v2, {vr(WO+4*t)} offset:{L_T3+t*512}')
    a('s_mov_b64 exec, -1'); a('s_waitcnt lgkmcnt(0)')
    stamp(7)
    a('s_barrier')
    for k in range(4): a(f'ds_read_b128 {vr(64+4*k)}, v3 offset:{L_T3+(k>>1)*T3W+(k&1)*1792}')
    a('v_lshrrev_b32 v1, 1, v0'); a('v_lshlrev_b32 v1, 4, v1'); a('v_mov_b32 v2, 0xffffff00')
    a('s_waitcnt lgkmcnt(2)')
    for r in range(4): a(f'v_add_f32 v{64+r}, v{64+r}, v{68+r}')
    a('s_waitcnt lgkmcnt(0)')
    for r in range(4): a(f'v_add_f32 v{72+r}, v{72+r}, v{76+r}')
    for r in range(4): a(f'v_add_f32 v{64+r}, v{64+r}, v{72+r}')
    for r in range(4): a(f'v_add_f32_dpp v{68+r}, v{64+r}, v{64+r} quad_perm:[1,0,3,2] {DPP}')
    for r in range(4): a(f'v_and_or_b32 v{68+r}, v{68+r}, v2, s{sT}')
    a(f's_mov_b64 exec, {sr(sM4,2)}')
    a(f'buffer_store_dwordx4 v[68:71], v1, {sr(rR1)}, s{sOA} offen sc1')
    stamp(8)
    ts_flush()
    a('s_endpgm')

    a('L_vwave:')
    X0 = 2; MK = 4; D = 8; B = 16; WQ = 32
    a('v_lshrrev_b32 v24, 4, v0'); a('v_and_b32 v25, 15, v0')
    a('v_lshlrev_b32 v1, 13, v24'); a('v_lshl_add_u32 v1, v25, 4, v1')
    a('v_lshlrev_b32 v26, 4, v0')
    a('v_lshl_add_u32 v27, v25, 2, v24'); a(f's_mul_i32 s12, s{sW}, 112'); a('v_add_lshl_u32 v27, v27, s12, 1')
    a(f's_mul_i32 s11, s{sB}, 896'); a(f's_lshl_b32 s12, s{sH}, 9'); a(f's_mul_i32 s{sTMP}, s{sW}, {112*8192}')
    a('s_waitcnt lgkmcnt(0)')
    srd(rM, sX, 's11', 896)
    srd(rA, sWQ, 's12', 448*8192 - 15*512)
    a(f'buffer_load_dwordx4 v[20:23], v26, {sr(rM)}, 0 offen')
    a(f'buffer_load_ushort v{X0}, v27, {sr(rM)}, 0 offen'); a(f'buffer_load_ushort v{X0+1}, v27, {sr(rM)}, 0 offen offset:128')
    for n in range(56):
        a(f'buffer_load_dwordx4 {vr(WQ+4*n)}, v1, {sr(rA)}, s{sTMP} offen offset:{(n&1)*256} {P["polQ"]}')
        if n & 1: a(f's_add_u32 s{sTMP}, s{sTMP}, 32768')
    masks(MK, 28, 29)
    a('s_waitcnt vmcnt(56)')
    for r in range(4):
        a(f'v_lshlrev_b32 v{D+2*r}, 16, v{20+r}'); a(f'v_and_b32 v{D+2*r+1}, 0xffff0000, v{20+r}')
    ln_stats([], list(range(D, D+8)), 0x00ffffff, 28, 29, 30, 31)
    a(f'v_lshlrev_b32 v{X0}, 16, v{X0}'); a(f'v_lshlrev_b32 v{X0+1}, 16, v{X0+1}')
    ln_apply([(X0, X0+1)], 30, 31, last=True)
    a('s_nop 1')
    for grp in range(28):
        for r in range(4): a(f'v_and_b32_dpp v{B+r}, v{X0+(grp>>4)}, v{MK+r} row_newbcast:{grp&15} {DPP}')
        for t in range(2):
            n = 2*grp+t
            a(f's_waitcnt vmcnt({55-n})')
            if t == 0: a('s_nop 0')
            a(f'v_mfma_f32_16x16x32_bf16 {vr(D+4*t)}, {vr(WQ+4*n)}, {vr(B)}, {"0" if grp == 0 else vr(D+4*t)}')
    a('v_lshlrev_b32 v20, 7, v24'); a('v_and_b32 v21, 7, v0'); a('v_lshl_add_u32 v20, v21, 2, v20'); a(f's_lshl_b32 s12, s{sW}, 10'); a('v_add_u32 v20, s12, v20')
    a('s_mov_b32 exec_lo, 0x00ff00ff'); a('s_mov_b32 exec_hi, 0x00ff00ff'); a('s_nop 0')
    for t in range(2):
        for r in range(4): a(f'ds_write_b32 v20, v{D+4*t+r} offset:{L_QP+t*512+r*32}')
    a('s_mov_b64 exec, -1'); a('s_waitcnt lgkmcnt(0)')
    stamp(1)
    a('s_barrier ; #1')
    skip = a.lab('L_nononce')
    a('s_cmp_lg_u32 s2, 0'); a(f's_cbranch_scc1 {skip}'); a('s_cmp_lg_u32 s3, 4'); a(f's_cbranch_scc1 {skip}')
    a('v_mov_b32 v21, 0'); a('s_mov_b64 exec, 1')
    a(f'global_load_dword v20, v21, {sr(sWS,2)} offset:{W_NONCE} sc1'); a('s_waitcnt vmcnt(0)')
    a('v_add_u32 v20, 1, v20'); a('v_and_b32 v20, 0xff, v20'); a('v_or_b32 v22, 0x100, v20')
    a(f'global_store_dword v21, v20, {sr(sWS,2)} offset:{W_NONCE} sc1'); a(f'global_store_dword v21, v22, {sr(sDBG,2)} sc1')
    a('s_waitcnt vmcnt(0)'); a('s_mov_b64 exec, -1')
    a(f'{skip}:')
    VR = 32; W1 = 96; W2 = 152; XT = 216; B1 = 224; B2 = 225; ACC = 232
    nomlp = a.lab('L_nomlpw')
    a(f's_cmp_ge_u32 s{sJM}, 28'); a(f's_cbranch_scc1 {nomlp}')
    a(f's_mul_i32 s12, s{sW}, {112*3584}'); a(f's_lshl_b32 s11, s{sJM}, 7'); a(f's_add_u32 s{sTMP}, s12, s11')
    srd(rA, sW1, None, 448*3584)
    a('v_lshrrev_b32 v20, 3, v0'); a('v_mul_u32_u24 v20, 3584, v20'); a('v_and_b32 v21, 7, v0'); a('v_lshl_add_u32 v20, v21, 4, v20')
    for n in range(14):
        if n >= P['WSIDE']: a(f's_waitcnt vmcnt({P["WSIDE"]-1})')
        a(f'buffer_load_dwordx4 {vr(W1+4*n)}, v20, {sr(rA)}, s{sTMP} offen {P["polW"]}')
        a(f's_add_u32 s{sTMP}, s{sTMP}, {8*3584}')
    a(f's_mul_i32 s12, s{sJM}, {64*896}'); a(f's_mul_i32 s11, s{sW}, 224'); a(f's_add_u32 s{sTMP}, s12, s11')
    srd(rA, sW2, None, 1792*896)
    a('v_mul_u32_u24 v20, 14336, v24'); a('v_lshl_add_u32 v20, v25, 4, v20'); a(f'v_mov_b32 v21, 0x{OOB:x}'); a('v_cmp_gt_u32 vcc, 14, v25'); a('s_nop 1'); a('v_cndmask_b32 v20, v21, v20, vcc')
    for n in range(16):
        a(f's_waitcnt vmcnt({P["WSIDE"]-1})')
        a(f'buffer_load_dwordx4 {vr(W2+4*n)}, v20, {sr(rA)}, s{sTMP} offen {P["polW"]}')
        a(f's_add_u32 s{sTMP}, s{sTMP}, 896')
    a('v_lshrrev_b32 v20, 3, v0'); a('v_lshlrev_b32 v20, 6, v20'); a('v_and_b32 v21, 7, v0'); a('v_lshl_add_u32 v20, v21, 1, v20')
    for k in range(8): a(f'buffer_load_ushort v{XT+k}, v20, {sr(rM)}, 0 offen offset:{(k>>2)*512+(k&3)*16}')
    a(f's_lshl_b32 s12, s{sJM}, 7'); srd(rM, sB1, 's12', 128); a('v_lshlrev_b32 v20, 1, v0')
    a(f'buffer_load_ushort v{B1}, v20, {sr(rM)}, 0 offen')
    a(f's_lshr_b32 s11, s{sJM}, 2'); a('s_mul_i32 s11, s11, 14'); a(f's_and_b32 s12, s{sJM}, 3'); a('s_lshl_b32 s12, s12, 2'); a(f's_add_u32 s{sT3}, s11, s12')
    srd(rM, sB2, None, 896); a(f's_lshl_b32 s12, s{sT3}, 4'); a('v_lshl_add_u32 v20, v21, 1, s12')
    for r in range(4): a(f'buffer_load_ushort v{B2+r}, v20, {sr(rM)}, 0 offen offset:{16*r}')
    a('s_waitcnt vmcnt(0)')
    for k in list(range(XT, XT+8)) + [B1] + list(range(B2, B2+4)): a(f'v_lshlrev_b32 v{k}, 16, v{k}')
    a(f'{nomlp}:')
    get_nonce(20)
    a(f's_lshl_b32 s12, s{sB}, 16'); a(f's_add_u32 s11, s12, {W_R1}'); srd(rR1, sWS, 's11', 65536)
    a(f's_add_u32 s11, s12, {W_R2}'); srd(rR2, sWS, 's11', 65536)
    a(f's_mul_i32 s11, s{sB}, 896'); srd(rO, sOUT, 's11', 896)
    srd(rS, sV, 's13', 1 << 20)
    a('v_lshlrev_b32 v1, 9, v24'); a('v_lshl_add_u32 v1, v25, 4, v1')
    a(f's_lshl_b32 s12, s{sW}, 11'); a('v_lshl_add_u32 v20, v0, 2, s12')
    a('v_and_b32 v21, 7, v0'); a('v_mul_u32_u24 v21, 144, v21'); a('v_lshl_add_u32 v21, v24, 4, v21'); a(f's_mul_i32 s12, s{sW}, 1152'); a('v_add_u32 v21, s12, v21')
    a('v_lshlrev_b32 v22, 4, v0'); a(f'v_mov_b32 v23, 0x{OOB:x}'); a('v_cmp_gt_u32 vcc, 48, v0'); a('v_mov_b32 v26, 0'); a(f'v_mov_b32 v27, s{sT}')
    a('v_cndmask_b32 v23, v23, v22, vcc'); a('v_cndmask_b32 v26, v26, v27, vcc')
    stamp(2)
    a('s_barrier ; #2')
    stamp(3)
    PC, PN = 2, 3
    WV = P['WV']
    for n in range(16):
        if n >= P['WV0']: a(f's_waitcnt vmcnt({P["WV0"]-1})')
        sload(n, VR, n, 1)
    a('s_barrier ; #3')
    stamp(4)
    a(f'ds_read_b32 v{PC}, v20 offset:{L_PP}'); a(f'ds_read_b32 v{PN}, v20 offset:{L_PP+256}'); a('v_add_u32 v20, 512, v20'); a('s_waitcnt lgkmcnt(0)')
    def vB(c):
        u, m = (c >> 1) & 3, (c >> 3) & 3
        if c & 31 == 0 and c > 0:
            a('s_waitcnt lgkmcnt(0)'); a(f'v_mov_b32 v{PC}, v{PN}'); a(f'ds_read_b32 v{PN}, v20 offset:{L_PP}'); a('v_add_u32 v20, 256, v20')
        for r in range(4): a(f'v_and_b32_dpp v{B+r}, v{PC}, v{MK+r} row_newbcast:{u*4+m} {DPP}')
    def vcons(c, first=False, pad=True):
        t = c & 1
        a(f'v_mfma_f32_16x16x32_bf16 {vr(D+4*t)}, {vr(VR+4*(c&15))}, {vr(B)}, {"0" if first else vr(D+4*t)}')
        if t == 1 and c < 255:
            vB(c+1)
            if pad: a('s_nop 1')
    vB(0); a('s_nop 1')
    c = 0
    for n in range(16, 32):
        while c <= n-16:
            if c >= 16-P['WV0'] and n == 16: a(f's_waitcnt vmcnt({15-c})')
            vcons(c, c < 2); c += 1
        a(f's_waitcnt vmcnt({WV-1})')
        sload(n, VR, n & 15, 1)
        k = 0
        while c <= n-WV and (k < 2 or n == 31):
            vcons(c, c < 2); c += 1; k += 1
    assert c == 32-WV
    a(f's_mov_b32 s{sCNT}, 7')
    a('L_vloop:')
    for n in range(32, 64):
        a(f's_waitcnt vmcnt({WV-1})')
        sload(n, VR, n & 15, 1)
        vcons(n-WV, pad=False)
    a(f's_sub_u32 s{sCNT}, s{sCNT}, 1'); a(f's_cmp_lg_u32 s{sCNT}, 0'); a('s_cbranch_scc1 L_vloop')
    for c in range(256-WV, 256):
        a(f's_waitcnt vmcnt({255-c})')
        vcons(c)
    stamp(5)
    a('s_mov_b32 exec_lo, 0x00ff00ff'); a('s_mov_b32 exec_hi, 0x00ff00ff'); a(f's_lshl_b32 s{sOA}, s{sW}, 14'); a(f's_mov_b32 s{sMASK}, 0xff'); a('s_nop 2')
    a(f'ds_write_b128 v21, {vr(D)} offset:{L_OP}'); a('s_nop 0'); a(f'ds_write_b128 v21, {vr(D+4)} offset:{L_OP+64}')
    a('s_mov_b64 exec, -1'); a('s_waitcnt lgkmcnt(0)')
    a('s_barrier ; #4')
    done = a.lab('L_vdone')
    nomlp2 = a.lab('L_nomlp')
    a(f's_cmp_ge_u32 s{sJM}, 28'); a(f's_cbranch_scc1 {nomlp2}')
    G = 32
    def gload(p, so):
        a(f'buffer_load_dwordx4 {vr(G+8*p)}, v22, {sr(rR1)}, {so} offen sc1')
        a(f'buffer_load_dwordx4 {vr(G+8*p+4)}, v23, {sr(rR1)}, {so} offen offset:1024 sc1')
    def gcheck(p):
        g = G+8*p
        for k in range(4): a(f'v_xor_b32 v{g+k}, s{sT}, v{g+k}')
        for k in range(4, 8): a(f'v_xor_b32 v{g+k}, v26, v{g+k}')
        a(f'v_or3_b32 v28, v{g}, v{g+1}, v{g+2}'); a(f'v_or3_b32 v29, v{g+3}, v{g+4}, v{g+5}'); a(f'v_or3_b32 v28, v28, v{g+6}, v{g+7}')
        a('v_or_b32 v28, v28, v29'); a('v_and_b32 v28, 0xff, v28'); a('v_cmp_ne_u32 vcc, 0, v28')
    for p in range(8):
        a(f's_add_u32 s12, s{sOA}, {p*2048}'); gload(p, 's12')
    a('s_barrier ; #5')
    stamp(6)
    for p in range(8):
        sk = a.lab('L_g')
        a(f's_waitcnt vmcnt({14-2*p})'); gcheck(p); a(f's_cbranch_vccnz {sk}'); a(f's_bitset0_b32 s{sMASK}, {p}'); a(f'{sk}:')
    a(f's_mov_b32 s{sCNT}, {SPIN}')
    a(f's_cmp_eq_u32 s{sMASK}, 0'); a('s_cbranch_scc1 L_gdone')
    a('L_ground:')
    for p in range(8):
        a(f's_bitcmp1_b32 s{sMASK}, {p}'); a(f's_cbranch_scc1 L_gh{p}'); a(f'L_gr{p}:')
    a(f's_cmp_eq_u32 s{sMASK}, 0'); a('s_cbranch_scc1 L_gdone')
    if P['sleep_poll']: a(f's_sleep {P["sleep_poll"]}')
    a(f's_sub_u32 s{sCNT}, s{sCNT}, 1'); a(f's_cmp_lg_u32 s{sCNT}, 0'); a('s_cbranch_scc1 L_ground')
    a('s_branch L_gdone')
    for p in range(8):
        a(f'L_gh{p}:')
        a(f's_add_u32 s12, s{sOA}, {p*2048}'); gload(p, 's12'); a('s_waitcnt vmcnt(0)'); gcheck(p)
        a(f's_cbranch_vccnz L_gr{p}'); a(f's_bitset0_b32 s{sMASK}, {p}'); a(f's_cmp_lg_u32 s{sMASK}, 0'); a(f's_cbranch_scc1 L_gr{p}')
        if p < 7: a('s_branch L_gdone')
    a('L_gdone:')
    stamp(7)
    for st in (1, 2, 4):
        for p in range(0, 8, 2*st):
            for k in range(0, 8, 2):
                a(f'v_pk_add_f32 {vr(G+8*p+k,2)}, {vr(G+8*p+k,2)}, {vr(G+8*(p+st)+k,2)}')
    a(f's_lshl_b32 s12, s{sW}, 11'); a('v_add_u32 v28, s12, v22')
    a(f'ds_write_b128 v28, {vr(G)} offset:{L_HP}'); a(f'ds_write_b128 v28, {vr(G+4)} offset:{L_HP+1024}')
    a('s_waitcnt lgkmcnt(0)')
    a('s_barrier')
    for v in range(4):
        for hlf in range(2): a(f'ds_read_b128 {vr(G+8*v+4*hlf)}, v22 offset:{L_HP+v*2048+hlf*1024}')
    a('v_and_b32 v28, 7, v0'); a('v_mul_u32_u24 v28, 272, v28'); a('v_lshrrev_b32 v29, 3, v0'); a('v_lshl_add_u32 v21, v29, 4, v28')
    a('v_mul_u32_u24 v20, 272, v29'); a(f's_mul_i32 s12, s{sW}, 56'); a('v_add_u32 v20, s12, v20')
    a('s_waitcnt lgkmcnt(4)')
    for k in range(0, 8, 2): a(f'v_pk_add_f32 {vr(G+k,2)}, {vr(G+k,2)}, {vr(G+8+k,2)}')
    a('s_waitcnt lgkmcnt(0)')
    for k in range(0, 8, 2): a(f'v_pk_add_f32 {vr(G+16+k,2)}, {vr(G+16+k,2)}, {vr(G+24+k,2)}')
    for k in range(0, 8, 2): a(f'v_pk_add_f32 {vr(G+k,2)}, {vr(G+k,2)}, {vr(G+16+k,2)}')
    H = G
    for k in range(0, 8, 2):
        bfr2(H+k, H+k+1); a(f'v_add_f32 v{H+k}, v{H+k}, v{XT+k}'); a(f'v_add_f32 v{H+k+1}, v{H+k+1}, v{XT+k+1}'); bfr2(H+k, H+k+1)
    a(f'ds_write_b128 v21, {vr(H)} offset:{L_HH}'); a(f'ds_write_b128 v21, {vr(H+4)} offset:{L_HH+128}')
    for it in range(2):
        ln_stats(list(range(H, H+4)), list(range(H+4, H+8)), 0xffff, 28, 29, 30, 31)
        ln_apply([(H, H+1), (H+2, H+3)], 30, 31, last=(it == 1))
        a('s_mov_b32 exec_hi, 0xffff')
        ln_apply([(H+4, H+5), (H+6, H+7)], 30, 31, last=(it == 1))
        a('s_mov_b32 exec_hi, -1')
    a(f'ds_write_b128 v21, {vr(H)} offset:{L_YY}'); a(f'ds_write_b128 v21, {vr(H+4)} offset:{L_YY+128}')
    a('s_waitcnt lgkmcnt(0)')
    Y = 48
    for k in range(7): a(f'ds_read_b64 {vr(Y+2*k,2)}, v20 offset:{L_YY+8*k}')
    a('v_and_b32 v28, 1, v24'); a('v_lshlrev_b32 v28, 10, v28'); a('v_and_b32 v29, 7, v0'); a('v_lshl_add_u32 v28, v29, 5, v28'); a('v_lshrrev_b32 v29, 5, v0'); a('v_lshl_add_u32 v28, v29, 2, v28')
    a(f's_lshl_b32 s12, s{sW}, 3'); a('v_add_u32 v28, s12, v28'); a('v_lshlrev_b32 v29, 5, v0')
    for ld in range(14):
        if ld & 1 == 0: a(f's_waitcnt lgkmcnt({6-ld//2})')
        bb = B + 4*(ld & 1) if False else (64 + 4*(ld & 1))
        for r in range(4): a(f'v_and_b32 v{bb+r}, v{Y+ld}, v{MK+r}')
        a('s_nop 1')
        a(f'v_mfma_f32_16x16x32_bf16 {vr(D)}, {vr(W1+4*ld)}, {vr(bb)}, {"0" if ld == 0 else vr(D)}')
    a('s_mov_b32 exec_lo, 0x00ff00ff'); a('s_mov_b32 exec_hi, 0xff00ff00'); a('s_nop 5')
    for r in range(4): a(f'ds_write_b32 v28, v{D+r} offset:{L_M1+r*256}')
    a('s_mov_b64 exec, -1'); a('s_waitcnt lgkmcnt(0)')
    stamp(8)
    a('s_barrier ; #7')
    a(f'ds_read_b128 v[64:67], v29 offset:{L_M1}'); a(f'ds_read_b128 v[68:71], v29 offset:{L_M1+16}')
    a('v_lshlrev_b32 v28, 12, v24'); a('v_and_b32 v30, 7, v0'); a('v_lshl_add_u32 v28, v30, 4, v28')
    a(f's_lshl_b32 s{sOA}, s{sW}, 14'); a(f's_lshl_b32 s12, s{sJM}, 7'); a(f's_add_u32 s{sOA}, s{sOA}, s12'); a('v_mov_b32 v31, 0xffffff00')
    a('s_waitcnt lgkmcnt(0)')
    a('v_pk_add_f32 v[64:65], v[64:65], v[66:67]'); a('v_pk_add_f32 v[68:69], v[68:69], v[70:71]'); a('v_pk_add_f32 v[64:65], v[64:65], v[68:69]'); a('v_add_f32 v64, v64, v65')
    bfr(64); a(f'v_add_f32 v64, v64, v{B1}'); bfr(64)
    a('v_mul_f32 v65, v64, v64'); a(f'v_mul_f32 v65, 0x{f2u(0.044715):x}, v65'); a('v_fma_f32 v65, v65, v64, v64')
    a(f'v_mul_f32 v65, 0x{f2u(-2*0.7978845608028654*1.4426950408889634):x}, v65'); a('v_exp_f32 v65, v65'); a('s_nop 0'); a('v_add_f32 v65, 1.0, v65'); a('v_rcp_f32 v65, v65'); a('s_nop 0')
    a('v_mul_f32 v64, v64, v65'); a('v_cvt_pk_bf16_f32 v64, v64, v64'); a('s_nop 1')
    for ld in range(16):
        bb = 68 + 4*(ld & 1)
        for r in range(4): a(f'v_and_b32_dpp v{bb+r}, v64, v{MK+r} row_newbcast:{ld} {DPP}')
        a('s_nop 1')
        a(f'v_mfma_f32_16x16x32_bf16 {vr(D)}, {vr(W2+4*ld)}, {vr(bb)}, {"0" if ld == 0 else vr(D)}')
    a('s_nop 7')
    for r in range(4): a(f'v_and_or_b32 v{D+r}, v{D+r}, v31, s{sT}')
    a('s_mov_b32 exec_lo, 0x00ff00ff'); a('s_mov_b32 exec_hi, 0x00ff00ff')
    a(f'buffer_store_dwordx4 {vr(D)}, v28, {sr(rR2)}, s{sOA} offen sc1')
    a('s_mov_b64 exec, -1')
    stamp(9)
    a(f's_cmp_lg_u32 s{sW}, 0'); a(f's_cbranch_scc1 {done}'); a(f's_cmp_ge_u32 s{sJM}, 16'); a(f's_cbranch_scc1 {done}')
    a(f'v_mov_b32 v23, 0x{OOB:x}'); a('v_cmp_gt_u32 vcc, 32, v0'); a('v_mov_b32 v26, 0'); a(f's_lshl_b32 s{sOA}, s{sJM}, 12')
    a('v_cndmask_b32 v23, v23, v22, vcc'); a('v_cndmask_b32 v26, v26, v27, vcc')
    a('v_mul_u32_u24 v29, 272, v30'); a(f's_lshl_b32 s12, s{sT3}, 2'); a('v_add_u32 v29, s12, v29')
    a(f'ds_read_b64 v[64:65], v29 offset:{L_HH}'); a(f'ds_read_b64 v[66:67], v29 offset:{L_HH+8}')
    a(f's_lshl_b32 s12, s{sT3}, 4'); a('v_lshl_add_u32 v20, v30, 1, s12')
    a(f's_mov_b32 s{sCNT}, {SPIN}')
    a('L_f:')
    for k in range(4): a(f'buffer_load_dwordx4 {vr(G+4*k)}, v{22 if k < 3 else 23}, {sr(rR2)}, s{sOA} offen offset:{1024*k} sc1')
    for k in range(4):
        a(f's_waitcnt vmcnt({3-k})')
        for r in range(4): a(f'v_xor_b32 v{G+4*k+r}, {("s%d" % sT) if k < 3 else "v26"}, v{G+4*k+r}')
        if k == 0: a(f'v_or3_b32 v28, v{G}, v{G+1}, v{G+2}'); a(f'v_or_b32 v28, v28, v{G+3}')
        else: a(f'v_or3_b32 v28, v28, v{G+4*k}, v{G+4*k+1}'); a(f'v_or3_b32 v28, v28, v{G+4*k+2}, v{G+4*k+3}')
    a('v_and_b32 v28, 0xff, v28'); a('v_cmp_ne_u32 vcc, 0, v28'); a('s_cbranch_vccz L_fok')
    a(f's_sub_u32 s{sCNT}, s{sCNT}, 1'); a(f's_cmp_lg_u32 s{sCNT}, 0'); a('s_cbranch_scc1 L_f')
    a('L_fok:')
    stamp(10)
    for k in range(0, 4, 2):
        a(f'v_pk_add_f32 {vr(G+k,2)}, {vr(G+k,2)}, {vr(G+4+k,2)}'); a(f'v_pk_add_f32 {vr(G+8+k,2)}, {vr(G+8+k,2)}, {vr(G+12+k,2)}')
    for k in range(0, 4, 2): a(f'v_pk_add_f32 {vr(G+k,2)}, {vr(G+k,2)}, {vr(G+8+k,2)}')
    a('s_nop 0')
    for r in range(4): a(f'v_add_f32_dpp v{G+4+r}, v{G+r}, v{G+r} row_ror:8 {DPP}')
    for sw in ('v_permlane16_swap_b32', 'v_permlane32_swap_b32'):
        for r in range(4): a(f'v_mov_b32 v{G+r}, v{G+4+r}')
        for r in range(4): a(f'{sw} v{G+r}, v{G+4+r}')
        for r in range(4): a(f'v_add_f32 v{G+4+r}, v{G+r}, v{G+4+r}')
    a('s_waitcnt lgkmcnt(0)')
    R = G+4
    for k in (0, 2):
        bfr2(R+k, R+k+1); a(f'v_add_f32 v{R+k}, v{R+k}, v{B2+k}'); a(f'v_add_f32 v{R+k+1}, v{R+k+1}, v{B2+k+1}'); bfr2(R+k, R+k+1)
        a(f'v_add_f32 v{R+k}, v{R+k}, v{64+k}'); a(f'v_add_f32 v{R+k+1}, v{R+k+1}, v{64+k+1}'); a(f'v_cvt_pk_bf16_f32 v{R+k}, v{R+k}, v{R+k+1}')
    a('s_mov_b64 exec, 0xff')
    a(f'buffer_store_short v{R}, v20, {sr(rO)}, 0 offen'); a(f'buffer_store_short_d16_hi v{R}, v20, {sr(rO)}, 0 offen offset:16')
    a(f's_and_b32 s12, s{sJM}, 3'); a('s_cmp_eq_u32 s12, 3'); a(f's_cbranch_scc1 {done}')
    a(f'buffer_store_short v{R+2}, v20, {sr(rO)}, 0 offen offset:32'); a(f'buffer_store_short_d16_hi v{R+2}, v20, {sr(rO)}, 0 offen offset:48')
    a(f's_branch {done}')
    a(f'{nomlp2}:')
    a('s_barrier ; #5')
    a(f'{done}:')
    ts_flush()
    a('L_end:')
    a('s_endpgm')
    a('.section .rodata,"a"'); a('.p2align 6'); a(f'.amdhsa_kernel {KN}')
    a('.amdhsa_next_free_vgpr 256'); a('.amdhsa_next_free_sgpr 102'); a('.amdhsa_accum_offset 256'); a('.amdhsa_group_segment_fixed_size 0'); a('.amdhsa_kernarg_size 104')
    a('.amdhsa_user_sgpr_count 2'); a('.amdhsa_user_sgpr_kernarg_segment_ptr 1'); a('.amdhsa_system_sgpr_workgroup_id_x 1'); a('.amdhsa_float_denorm_mode_32 3'); a('.end_amdhsa_kernel')
    errs = hazard.check(a.L)
    if errs:
        print('\n'.join(errs), file=sys.stderr); raise SystemExit('hazards')
    return '\n'.join(a.L) + '\n'

if __name__ == '__main__':
    out = sys.argv[1]; kw = {}
    for x in sys.argv[2:]:
        k, v = x.split('=')
        kw[k] = v.replace('+', ' ') if k.startswith('pol') else int(v)
    open(out, 'w').write(gen(**kw))
```
